```python
import torch

def _softmax(x, axis=-1):
    return torch.softmax(x, dim=axis)
def _gelu(x):
    return torch.nn.functional.gelu(x, approximate="tanh")
def _silu(x):
    return torch.nn.functional.silu(x)
def _sigmoid(x):
    return torch.sigmoid(x)
def _layernorm(x, axis=-1, eps=1e-5):
    m = x.mean(dim=axis, keepdim=True)
    v = x.var(dim=axis, keepdim=True, unbiased=False)
    return (x - m) / torch.sqrt(v + eps)
def _scatter_add(tgt, idx, src, axis=0):
    return tgt.clone().index_add_(axis, idx, src)
def _segment_sum(src, seg, n):
    out = torch.zeros((n,) + src.shape[1:], dtype=src.dtype)
    return out.index_add_(0, seg, src)
def _pad(x, pw):
    flat = tuple(v for pair in reversed(pw) for v in pair)
    return torch.nn.functional.pad(x, flat)

kernel_name = 'standalone__depthwise_separable__vision'

def setup_inputs():

    _w = (lambda a: (lambda t: t.to(torch.bfloat16) if t.is_floating_point() else t)(torch.as_tensor(a)))
    H = W = 384
    C = 96
    k = 3
    return {
        "x": _w((lambda *s: torch.randn(*s, dtype=torch.bfloat16) * 0.05)(1, H, W, C)),
        "dw": _w((lambda *s: torch.randn(*s, dtype=torch.bfloat16) * 0.05)(k, k, C)),
        "pw": _w((lambda *s: torch.randn(*s, dtype=torch.bfloat16) * 0.05)(C, C)),
    }

def reference(x, dw, pw):
    B, H, W, C = x.shape
    k = dw.shape[0]
    pad = k // 2
    xp = _pad(x, ((0,0),(pad,pad),(pad,pad),(0,0)))
    out = torch.zeros_like(x)
    for i in range(k):
        for j in range(k):
            out = out + xp[:, i:i+H, j:j+W, :] * dw[i, j][None, None, None, :]
    return torch.einsum('bhwc,cd->bhwd', out, pw)
```

```python
import re

REG_RE = re.compile(r'\b([vas])\[(\d+):(\d+)\]|\b([vas])(\d+)\b')


def regs_of(tok):
    out = []
    for m in REG_RE.finditer(tok):
        if m.group(1):
            out += [(m.group(1), i) for i in range(int(m.group(2)), int(m.group(3)) + 1)]
        else:
            out.append((m.group(4), int(m.group(5))))
    if re.search(r'\bvcc\b', tok):
        out.append(('s', 'vcc'))
    if re.search(r'\bm0\b', tok):
        out.append(('s', 'm0'))
    return out


class Ins:
    def __init__(self, text):
        self.text = text
        t = text.split(';')[0].strip()
        self.label = t.endswith(':')
        self.directive = t.startswith('.')
        self.op = t.split()[0] if t else ''
        rest = t[len(self.op):]
        ops = [o.strip() for o in rest.split(',')] if rest.strip() else []
        op = self.op
        self.kind = 'other'
        self.w, self.r, self.srcc, self.data = [], [], [], []
        if self.label or self.directive or not op:
            self.kind = 'none'
        elif op.startswith('v_mfma') or op.startswith('v_smfmac'):
            self.kind = 'mfma'
            self.w = regs_of(ops[0])
            self.r = regs_of(ops[1]) + regs_of(ops[2])
            if op.startswith('v_smfmac'):
                self.srcc = regs_of(ops[0])
                self.r += regs_of(ops[3])
            else:
                self.srcc = regs_of(ops[3])
            self.passes = 8 if '32x32' in op else 4
            if 'smfmac' in op and '16x16x64' in op:
                self.passes = 8
        elif op.startswith('v_'):
            self.kind = 'valu'
            self.w = regs_of(ops[0])
            self.r = [x for o in ops[1:] for x in regs_of(o)]
            if op.startswith('v_add_co') or op.startswith('v_addc_co') or op.startswith('v_sub_co'):
                self.w += regs_of(ops[1])
            if op.startswith('v_permlane'):
                self.w += regs_of(ops[1])
                self.r += regs_of(ops[0])
            if op.startswith('v_fmac') or op.startswith('v_writelane'):
                self.r += regs_of(ops[0])
        elif op.startswith('ds_read'):
            self.kind = 'ds'
            self.w = regs_of(ops[0])
            self.r = regs_of(ops[1])
        elif op.startswith('ds_'):
            self.kind = 'ds'
            self.r = [x for o in ops for x in regs_of(o)]
        elif op.startswith('buffer_store') or op.startswith('global_store'):
            self.kind = 'vmem'
            self.r = [x for o in ops for x in regs_of(o)]
            d = ops[0] if op.startswith('buffer') else ops[1]
            if 'x3' in op or 'x4' in op:
                self.data = regs_of(d)
        elif op.startswith('buffer_load') or op.startswith('global_load'):
            self.kind = 'vmem'
            if ' lds' in t or '_lds_' in op:
                self.r = [x for o in ops for x in regs_of(o)] + [('s', 'm0')]
                self.dma = True
            else:
                self.w = regs_of(ops[0])
                self.r = [x for o in ops[1:] for x in regs_of(o)]
        elif op.startswith('s_'):
            self.kind = 'salu'
            if op in ('s_waitcnt', 's_barrier', 's_nop', 's_endpgm', 's_setprio', 's_sleep') or \
                    op.startswith('s_cbranch') or op == 's_branch':
                pass
            elif op.startswith('s_cmp') or op.startswith('s_bitcmp'):
                self.r = [x for o in ops for x in regs_of(o)]
            else:
                self.w = regs_of(ops[0])
                self.r = [x for o in ops[1:] for x in regs_of(o)]

    def states(self):
        if self.kind == 'none':
            return 0
        if self.op == 's_nop':
            return int(self.text.split()[1]) + 1
        return 1


def need(p, c):
    n = 0
    pw, cr, cw = set(p.w), set(c.r), set(c.w)
    if p.kind == 'mfma':
        big = {4: 8, 8: 12}[p.passes]
        ovl = {4: 6, 8: 10}[p.passes]
        if c.kind == 'mfma':
            if pw & cr:
                n = max(n, big)
            if pw & set(c.srcc):
                same = p.w == c.srcc and p.passes == c.passes
                n = max(n, 0 if same else ovl)
            elif pw & cw:
                n = max(n, ovl)
        elif c.kind in ('valu', 'ds', 'vmem'):
            if pw & (cr | cw):
                n = max(n, big)
            if c.kind == 'valu' and set(p.srcc) & cw:
                n = max(n, {4: 3, 8: 7}[p.passes])
    elif p.kind == 'valu':
        pv = {x for x in pw if x[0] != 's'}
        ps = {x for x in pw if x[0] == 's'}
        if c.kind == 'mfma' and pv & (cr | set(c.srcc)):
            n = max(n, 2)
        if c.kind == 'valu':
            if (c.op.startswith('v_readfirstlane') or c.op.startswith('v_readlane')) and pv & cr:
                n = max(n, 1)
            if c.op.startswith('v_permlane') and pv & cr:
                n = max(n, 2)
            if 'dpp' in c.text or 'row_' in c.text or 'quad_perm' in c.text:
                if pv & cr:
                    n = max(n, 2)
            if ps & cr:
                n = max(n, 2)
        if c.kind == 'vmem' and ps & cr:
            n = max(n, 5)
        if c.kind == 'salu' and ps & cr:
            n = max(n, 1)
    elif p.kind == 'vmem' and p.data:
        if set(p.data) & cw:
            n = max(n, 2)
    elif p.kind == 'salu':
        if ('s', 'm0') in pw and getattr(c, 'dma', False):
            n = max(n, 1)
    return n


def fix_hazards(lines, window=24):
    out = []
    for text in lines:
        c = Ins(text)
        if c.kind != 'none':
            dist, pad = 0, 0
            for p in reversed(out):
                if dist >= window:
                    break
                if p.kind != 'none':
                    pad = max(pad, need(p, c) - dist)
                dist += p.states()
            while pad > 0:
                k = min(pad, 16)
                out.append(Ins('s_nop %d' % (k - 1)))
                pad -= k
        out.append(c)
    return [i.text for i in out]


def check_loop(body):
    twice = fix_hazards(body + body)
    assert len(twice) == 2 * len(body), 'loop back edge needs padding'


def fmt(lines):
    res = []
    for l in lines:
        s = l.strip()
        if s.endswith(':') or s.startswith('.') or s.startswith(';'):
            res.append(s)
        else:
            res.append('    ' + s)
    return '\n'.join(res) + '\n'
```

```python
import sys
from asmlib import *

NAME = 'standalone__depthwise_separable__vision_kernel'
ROWB = 73728
TOTAL = 28311552
PITCH = 5120
PW_BASE = 26 * PITCH
DW_BASE = PW_BASE + 18432
LDS = DW_BASE + 2560


def gen(depth=12, ld_flags='', st_flags='', xcd_map=1):
    L = []
    e = L.append
    e('s_cmp_ge_u32 s2, 256')
    e('s_cbranch_scc1 L_end')
    e('s_load_dwordx4 s[4:7], s[0:1], 0')
    e('s_load_dwordx4 s[8:11], s[0:1], 16')
    e('v_readfirstlane_b32 s12, v0')
    if xcd_map:
        e('s_and_b32 s13, s2, 7')
        e('s_lshr_b32 s14, s2, 3')
        e('s_lshr_b32 s15, s13, 1')
        e('s_lshl_b32 s15, s15, 2')
        e('s_lshr_b32 s16, s14, 3')
        e('s_add_u32 s15, s15, s16          ; ty')
        e('s_and_b32 s13, s13, 1')
        e('s_lshl_b32 s13, s13, 3')
        e('s_and_b32 s14, s14, 7')
        e('s_add_u32 s14, s14, s13          ; tx')
    else:
        e('s_lshr_b32 s15, s2, 4')
        e('s_and_b32 s14, s2, 15')
    e('s_mul_i32 s16, s15, %d' % (24 * ROWB))
    e('s_mul_i32 s17, s14, %d' % (24 * 192))
    e('s_add_u32 s16, s16, s17')
    e('s_lshr_b32 s12, s12, 6')
    e('s_cmp_lg_u32 s12, 0')
    e('s_cbranch_scc1 L_compute')
    e('v_lshlrev_b32 v1, 4, v0')
    e('v_lshrrev_b32 v2, 2, v0')
    e('v_and_b32 v3, 3, v0')
    e('v_lshlrev_b32 v4, 6, v2')
    for j in range(5):
        e('v_add_u32 v5, %d, v2' % (16 * j + 11))
        e('v_mul_u32_u24 v5, 0xaaab, v5')
        e('v_lshrrev_b32 v5, 19, v5')
        e('v_sub_u32 v5, v3, v5')
        e('v_add_u32 v5, 1, v5')
        e('v_and_b32 v5, 3, v5')
        e('v_lshl_add_u32 v%d, v5, 4, v4' % (8 + j))
    e('v_add_u32 v12, 0x1000, v12')
    e('s_cmp_eq_u32 s14, 0')
    e('s_cselect_b32 s18, 16, 4')
    e('s_cmp_eq_u32 s14, 15')
    e('s_cselect_b32 s19, 48, 60')
    e('v_mov_b32 v6, 0x40000000')
    e('v_cmp_gt_u32 vcc, s18, v0')
    e('v_cndmask_b32 v8, v8, v6, vcc')
    e('v_cmp_le_u32 vcc, s19, v0')
    e('v_cndmask_b32 v12, v12, v6, vcc')
    e('s_waitcnt lgkmcnt(0)')
    e('s_mov_b32 s20, s6')
    e('s_mov_b32 s21, s7')
    e('s_mov_b32 s22, 1728')
    e('s_mov_b32 s23, 0x20000')
    e('s_mov_b32 m0, %d' % DW_BASE)
    e('s_mov_b32 s24, s8')
    e('buffer_load_dwordx4 v1, s[20:23], 0 offen lds')
    e('buffer_load_dwordx4 v1, s[20:23], 0 offen offset:1024 lds')
    e('s_mov_b32 s25, s9')
    e('s_mov_b32 s26, 18432')
    e('s_mov_b32 s27, 0x20000')
    e('s_mov_b32 s28, 0')
    e('s_mov_b32 m0, %d' % PW_BASE)
    e('L_pw:')
    for j in range(3):
        e('buffer_load_dwordx4 v1, s[24:27], s28 offen offset:%d lds' % (1024 * j))
    e('s_add_u32 m0, m0, 3072')
    e('s_add_u32 s28, s28, 3072')
    e('s_cmp_lt_u32 s28, 18432')
    e('s_cbranch_scc1 L_pw')
    e('s_add_u32 s20, s4, s16')
    e('s_addc_u32 s21, s5, 0')
    e('s_sub_u32 s20, s20, %d' % (ROWB + 256))
    e('s_subb_u32 s21, s21, 0')
    e('s_mov_b32 s29, 0x3ffffff')
    e('s_cmp_eq_u32 s15, 0')
    e('s_cselect_b32 s30, 1, 0')
    e('s_andn2_b32 s29, s29, s30')
    e('s_cmp_eq_u32 s15, 15')
    e('s_cselect_b32 s30, 0x2000000, 0')
    e('s_andn2_b32 s29, s29, s30')
    need_rows = [-1] + [4 * r + 5 for r in range(6)]
    barmask = 0
    done_in_loop = 0
    for nr in need_rows:
        row = nr + depth
        if row <= 25:
            assert not barmask >> row & 1
            barmask |= 1 << row
            done_in_loop += 1
    e('s_mov_b32 s31, 0x%x' % barmask)
    e('s_mov_b32 s28, 0')
    e('s_mov_b32 s33, 0')
    e('L_row:')
    e('s_bitcmp1_b32 s29, s28')
    e('s_cselect_b32 s22, %d, 0' % PITCH)
    e('s_mov_b32 m0, s33')
    e('s_waitcnt vmcnt(%d)' % (5 * (depth - 1)))
    for j in range(4):
        e('buffer_load_dwordx4 v%d, s[20:23], 0 offen offset:%d %slds' % (8 + j, 1024 * j, ld_flags))
    e('s_add_u32 m0, s33, 4096')
    e('s_add_u32 s33, s33, %d' % PITCH)
    e('buffer_load_dwordx4 v12, s[20:23], 0 offen %slds' % ld_flags)
    e('s_add_u32 s20, s20, %d' % ROWB)
    e('s_addc_u32 s21, s21, 0')
    e('s_bitcmp1_b32 s31, s28')
    e('s_cbranch_scc0 L_nobar')
    e('s_barrier')
    e('L_nobar:')
    e('s_and_b32 s30, s28, 1')
    e('s_lshl_b32 s30, s30, 5')
    for j in range(5):
        e('v_xor_b32 v%d, s30, v%d' % (8 + j, 8 + j))
    e('s_add_u32 s28, s28, 1')
    e('s_cmp_lt_u32 s28, 26')
    e('s_cbranch_scc1 L_row')
    for nr in need_rows[done_in_loop:]:
        e('s_waitcnt vmcnt(%d)' % (5 * (25 - nr)))
        e('s_barrier')
    e('s_endpgm')

    ADDR = 2
    STO = 1
    Y = [16, 24]
    D1 = [32, 48]
    D2 = 64
    A1 = 112
    B2 = 0
    FR = 72
    e('L_compute:')
    e('s_sub_u32 s12, s12, 1')
    e('v_and_b32 v0, 63, v0')
    e('v_and_b32 v16, 15, v0             ; n')
    e('v_lshrrev_b32 v17, 4, v0          ; q')
    e('v_and_b32 v18, 3, v16')
    e('v_lshrrev_b32 v19, 2, v16')
    e('v_lshl_add_u32 v18, v18, 2, v19   ; pi(n)')
    e('s_lshl_b32 s18, s12, 4')
    e('v_add_u32 v18, s18, v18           ; P')
    e('v_cmp_le_u32 vcc, 24, v18')
    e('v_cndmask_b32 v20, 0, 1, vcc      ; R')
    e('v_mul_u32_u24 v21, 24, v20')
    e('v_sub_u32 v18, v18, v21           ; col')
    e('v_lshl_add_u32 v21, v20, 1, v17   ; rho')
    e('v_mul_u32_u24 v22, %d, v21' % PITCH)
    e('v_and_b32 v21, 2, v21')
    for j in range(3):
        e('v_add_u32 v23, %d, v18' % j)
        e('v_mul_u32_u24 v24, 192, v23')
        e('v_add3_u32 v24, v24, v22, 64')
        e('v_lshrrev_b32 v23, 2, v23')
        e('v_add_u32 v23, v23, v21')
        for k in range(4):
            e('v_add_u32 v25, %d, v23' % k)
            e('v_and_b32 v25, 3, v25')
            e('v_lshl_add_u32 v%d, v25, 4, v24' % (ADDR + 4 * j + k))
    e('v_mul_u32_u24 v%d, 12, v0' % STO)
    e('v_add_u32 v%d, s16, v%d' % (STO, STO))
    for r in range(4):
        e('s_add_u32 s19, s18, %d' % (4 * r))
        e('s_cmp_ge_u32 s19, 24')
        e('s_cselect_b32 s20, %d, 0' % (2 * ROWB - 24 * 192))
        e('s_mul_i32 s19, s19, 192')
        e('s_add_u32 s%d, s19, s20' % (32 + r))
        e('s_add_u32 s%d, s%d, %d' % (36 + r, 32 + r, ROWB))
    e('v_bfe_u32 v26, v16, 1, 1          ; o')
    e('v_sub_u32 v26, v17, v26           ; i')
    e('v_mov_b32 v27, 0xffff')
    e('v_and_b32 v28, 1, v16')
    e('v_lshlrev_b32 v28, 4, v28')
    e('v_lshlrev_b32 v27, v28, v27')
    e('v_cmp_gt_u32 vcc, 3, v26')
    e('v_cndmask_b32 v27, 0, v27, vcc')
    for k in range(4):
        e('v_cmp_eq_u32 vcc, %d, v19' % k)
        e('v_cndmask_b32 v%d, 0, v27, vcc' % (20 + k))
    e('v_mul_i32_i24 v24, 576, v26')
    e('v_add_u32 v24, %d, v24' % DW_BASE)
    e('v_mul_u32_u24 v25, 384, v17')
    e('v_mul_u32_u24 v28, 12, v16')
    e('v_add_u32 v25, v25, v28')
    e('v_add_u32 v25, %d, v25' % PW_BASE)
    e('s_mov_b32 s20, 0x05040100')
    e('s_mov_b32 s21, 0x07060302')
    e('s_waitcnt lgkmcnt(0)')
    e('s_mov_b32 s24, s10')
    e('s_mov_b32 s25, s11')
    e('s_mov_b32 s26, %d' % TOTAL)
    e('s_mov_b32 s27, 0x20000')
    e('s_barrier')
    reads, work = [], []
    for cg in range(12):
        t0 = 32 + 6 * cg
        rd = ['ds_read2_b32 v[%d:%d], v25 offset0:%d offset1:%d' % (t0 + 2 * u, t0 + 2 * u + 1, u, 48 + u)
              for u in range(3)]
        rd.append('v_add_u32 v25, 1536, v25')
        wk = []
        for u in range(3):
            for h in range(2):
                wk.append('v_perm_b32 v%d, v%d, v%d, s%d' % (26 + 2 * u + h, t0 + 2 * u + 1, t0 + 2 * u, 20 + h))
        for t in range(6):
            wk.append('v_accvgpr_write_b32 a%d, v%d' % (B2 + ((cg >> 2) * 6 + t) * 4 + (cg & 3), 26 + t))
        reads.append(rd)
        work.append(wk)
    for cg in range(12):
        rd, wk = [], []
        for j in range(3):
            b = A1 + (cg * 3 + j) * 4
            rd.append('ds_read_b128 v[%d:%d], v24 offset:%d' % (b, b + 3, j * 192 + cg * 16))
            wk += ['v_and_b32 v%d, v%d, v%d' % (b + k, 20 + k, b + k) for k in range(4)]
        reads.append(rd)
        work.append(wk)
    AH = 4
    for g in range(AH):
        L.extend(reads[g])
    for g in range(24):
        if g + AH < 24:
            L.extend(reads[g + AH])
        e('s_waitcnt lgkmcnt(%d)' % (3 * min(AH, 23 - g)))
        L.extend(work[g])
    e('s_mov_b32 s28, 0')
    L = fix_hazards(L)

    def rd(f):
        cg, j = divmod(f, 3)
        return 'ds_read_b128 a[%d:%d], v%d offset:%d' % (FR + 4 * f, FR + 4 * f + 3, ADDR + 4 * j + (cg & 3),
                                                         (cg >> 2) * 64)

    def s1(cg, j):
        d = D1[(cg >> 2) & 1] + 4 * (cg & 3)
        f = cg * 3 + j
        c = '0' if j == 0 else 'v[%d:%d]' % (d, d + 3)
        return 'v_mfma_f32_16x16x32_bf16 v[%d:%d], v[%d:%d], a[%d:%d], %s' % (
            d, d + 3, A1 + 4 * f, A1 + 4 * f + 3, FR + 4 * f, FR + 4 * f + 3, c)

    def cv(cg):
        s, k = divmod(cg, 4)
        d = D1[s & 1] + 4 * k
        return ['v_cvt_pk_bf16_f32 v%d, v%d, v%d' % (Y[s & 1] + 4 * o + k, d + 2 * o, d + 2 * o + 1) for o in range(2)]

    def s2(s, o, t):
        d = D2 + (o * 6 + t) * 4
        y = Y[s & 1] + 4 * o
        b = B2 + (s * 6 + t) * 4
        c = '0' if s == 0 else 'v[%d:%d]' % (d, d + 3)
        return 'v_mfma_f32_16x16x32_bf16 v[%d:%d], v[%d:%d], a[%d:%d], %s' % (d, d + 3, y, y + 3, b, b + 3, c)

    def out(o, r):
        st = D1[1 - o] + 4 * r
        res = ['v_cvt_pk_bf16_f32 v%d, v%d, v%d' % (st + u, D2 + (o * 6 + 2 * u) * 4 + r, D2 + (o * 6 + 2 * u + 1) * 4 + r)
               for u in range(3)]
        res.append('buffer_store_dwordx3 v[%d:%d], v%d, s[24:27], s%d offen %s' % (st, st + 2, STO, 32 + 4 * o + r, st_flags))
        return res

    mf = []
    for cg in range(8):
        mf += [('s1', cg, j) for j in range(3)]
    mf += [('s2', 0, o, t) for o in range(2) for t in range(6)]
    for cg in range(8, 12):
        mf += [('s1', cg, j) for j in range(3)]
    for o in range(2):
        mf += [('s2', 1, o, t) for t in range(6)]
        mf += [('s2', 2, o, t) for t in range(6)]
    fill = {i: [] for i in range(len(mf))}
    for cg in range(12):
        last = mf.index(('s1', cg, 2))
        a, b = cv(cg)
        fill[last + 4].append(a)
        fill[last + 5].append(b)
    o0 = [x for r in range(4) for x in out(0, r)]
    pos = mf.index(('s2', 2, 0, 5)) + 4
    while o0:
        fill[pos] += o0[:2]
        o0 = o0[2:]
        pos += 1
    for a in range(12):
        fill[mf.index(('s1', 8, 0)) + a].append('v_add_u32 v%d, %d, v%d' % (ADDR + a, 4 * PITCH, ADDR + a))
    B = ['L_loop:', 's_barrier']
    PRE = 9
    issued = 0
    for f in range(PRE):
        B.append(rd(f))
        issued += 1
    for i, m in enumerate(mf):
        if m[0] == 's1':
            if m[2] == 0:
                B.append('s_waitcnt lgkmcnt(%d)' % (issued - (m[1] * 3 + 3)))
            B.append(s1(m[1], m[2]))
        else:
            B.append(s2(*m[1:]))
        if issued < 36:
            B.append(rd(issued))
            issued += 1
        B += fill[i]
    for r in range(4):
        B += out(1, r)
    B.append('v_add_u32 v%d, %d, v%d' % (STO, 4 * ROWB, STO))
    B.append('s_add_u32 s28, s28, 1')
    B.append('s_cmp_lt_u32 s28, 6')
    B.append('s_cbranch_scc1 L_loop')
    B = fix_hazards(B)
    check_loop(B)
    L += B
    L.append('L_end:')
    L.append('s_endpgm')

    head = '''; Depthwise 3x3 + pointwise 96x96, NHWC bf16, 384x384x96.
; One 24x24 output tile per workgroup: wave 0 streams the haloed tile into LDS,
; waves 1..3 run both stages on the matrix cores.
; @launch grid=(256,1,1) block=(256,1,1) lds=%d
.amdgcn_target "amdgcn-amd-amdhsa--gfx950"
.text
.globl %s
.p2align 8
.type %s,@function
%s:
''' % (LDS, NAME, NAME, NAME)
    tail = '''.section .rodata,"a"
.p2align 6
.amdhsa_kernel %s
  .amdhsa_next_free_vgpr 512
  .amdhsa_next_free_sgpr 48
  .amdhsa_accum_offset 256
  .amdhsa_group_segment_fixed_size 0
  .amdhsa_kernarg_size 48
  .amdhsa_user_sgpr_count 2
  .amdhsa_user_sgpr_kernarg_segment_ptr 1
  .amdhsa_system_sgpr_workgroup_id_x 1
.end_amdhsa_kernel
''' % NAME
    return head + fmt(L) + tail


if __name__ == '__main__':
    kw = {}
    for a in sys.argv[2:]:
        k, v = a.split('=', 1)
        kw[k] = int(v) if v.lstrip('-').isdigit() else (v.replace('+', ' ') + ' ')
    open(sys.argv[1], 'w').write(gen(**kw))
```

```python
import sys, re
src, dst, idx, K, nrec = sys.argv[1], sys.argv[2], int(sys.argv[3]), int(sys.argv[4]), int(sys.argv[5])
op = sys.argv[6] if len(sys.argv) > 6 else 'max'
s = open(src).read()
N = 'standalone__depthwise_separable__vision_kernel'
m = re.search(r'; @launch (grid=.*)\n', s)
s = s.replace(m.group(0), '; @launch kernel=%s %s\n; @launch kernel=amp_kernel grid=(1,1,1) block=(%d,1,1) lds=64\n' % (N, m.group(1), nrec))
code = '''
.globl amp_kernel
.p2align 8
.type amp_kernel,@function
amp_kernel:
    s_cmp_ge_u32 s2, 1
    s_cbranch_scc1 A_end
    s_load_dwordx2 s[4:5], s[0:1], 40
    v_lshlrev_b32 v1, 6, v0
    v_mov_b32 v2, 0
    v_mov_b32 v4, -1
    v_mov_b32 v5, %s
    ds_write_b64 v2, v[4:5]
    s_waitcnt lgkmcnt(0)
    global_load_dword v6, v1, s[4:5]
    global_load_dword v7, v1, s[4:5] offset:%d
    s_barrier
    s_waitcnt vmcnt(0)
    ds_min_u32 v2, v6
    ds_%s_u32 v2, v7 offset:4
    s_waitcnt lgkmcnt(0)
    s_barrier
    ds_read_b64 v[4:5], v2
    s_waitcnt lgkmcnt(0)
    v_sub_u32 v4, v5, v4
    v_min_u32 v4, 4000, v4
    v_mul_u32_u24 v4, %d, v4
    s_nop 1
    v_readfirstlane_b32 s6, v4
    s_memrealtime s[8:9]
    s_waitcnt lgkmcnt(0)
    s_mov_b32 s7, 0
A_loop:
    s_memrealtime s[10:11]
    s_waitcnt lgkmcnt(0)
    s_sub_u32 s12, s10, s8
    s_add_u32 s7, s7, 1
    s_cmp_gt_u32 s7, 200000
    s_cbranch_scc1 A_end
    s_cmp_lt_u32 s12, s6
    s_cbranch_scc1 A_loop
A_end:
    s_endpgm
''' % ('0' if op == 'max' else '-1', 4 * idx, op, K)
desc = '''.p2align 6
.amdhsa_kernel amp_kernel
  .amdhsa_next_free_vgpr 8
  .amdhsa_next_free_sgpr 16
  .amdhsa_accum_offset 8
  .amdhsa_group_segment_fixed_size 0
  .amdhsa_kernarg_size 48
  .amdhsa_user_sgpr_count 2
  .amdhsa_user_sgpr_kernarg_segment_ptr 1
  .amdhsa_system_sgpr_workgroup_id_x 1
.end_amdhsa_kernel
'''
s = s.replace('.section .rodata,"a"', code + '.section .rodata,"a"') + desc
open(dst, 'w').write(s)
```

```python
import sys, re
src, dst = sys.argv[1], sys.argv[2]
a, b, op, first, stride, n = sys.argv[3].split(',')
a, b, first, stride, n = map(int, (a, b, first, stride, n))
K = int(sys.argv[4]) if len(sys.argv) > 4 else 10
s = open(src).read()
N = 'standalone__depthwise_separable__vision_kernel'
m = re.search(r'; @launch (grid=.*)\n', s)
s = s.replace(m.group(0), '; @launch kernel=%s %s\n; @launch kernel=amp_kernel grid=(1,1,1) block=(256,1,1) lds=64\n' % (N, m.group(1)))
code = '''
.globl amp_kernel
.p2align 8
.type amp_kernel,@function
amp_kernel:
    s_cmp_ge_u32 s2, 1
    s_cbranch_scc1 A_end
    s_load_dwordx2 s[4:5], s[0:1], 40
    v_lshlrev_b32 v1, 6, v0
    v_min_u32 v3, %d, v0
    v_mul_u32_u24 v3, %d, v3
    v_add_u32 v3, %d, v3
    v_mov_b32 v2, 0
    v_mov_b32 v4, -1
    v_mov_b32 v5, %s
    ds_write_b64 v2, v[4:5]
    s_waitcnt lgkmcnt(0)
    global_load_dword v6, v1, s[4:5]
    global_load_dword v7, v3, s[4:5] offset:%d
    global_load_dword v8, v3, s[4:5] offset:%d
    s_barrier
    s_waitcnt vmcnt(0)
    ds_min_u32 v2, v6
    s_waitcnt lgkmcnt(0)
    s_barrier
    ds_read_b32 v4, v2
    s_waitcnt lgkmcnt(0)
    v_sub_u32 v7, v7, %s
    ds_%s_u32 v2, v7 offset:4
    s_waitcnt lgkmcnt(0)
    s_barrier
    ds_read_b32 v4, v2 offset:4
    s_waitcnt lgkmcnt(0)
    v_lshrrev_b32 v4, %d, v4
    v_min_u32 v4, 4000, v4
    v_mul_u32_u24 v4, %d, v4
    s_nop 1
    v_readfirstlane_b32 s6, v4
    s_memrealtime s[8:9]
    s_waitcnt lgkmcnt(0)
    s_mov_b32 s7, 0
A_loop:
    s_memrealtime s[10:11]
    s_waitcnt lgkmcnt(0)
    s_sub_u32 s12, s10, s8
    s_add_u32 s7, s7, 1
    s_cmp_gt_u32 s7, 200000
    s_cbranch_scc1 A_end
    s_cmp_lt_u32 s12, s6
    s_cbranch_scc1 A_loop
A_end:
    s_endpgm
''' % (n - 1, stride * 64, first * 64, '-1' if op == 'min' else '0', 4 * a, 4 * max(b, 0), 'v4' if b < 0 else 'v8',
       op, 8 if op == 'add' else 0, K)
desc = '''.p2align 6
.amdhsa_kernel amp_kernel
  .amdhsa_next_free_vgpr 16
  .amdhsa_next_free_sgpr 16
  .amdhsa_accum_offset 16
  .amdhsa_group_segment_fixed_size 0
  .amdhsa_kernarg_size 48
  .amdhsa_user_sgpr_count 2
  .amdhsa_user_sgpr_kernarg_segment_ptr 1
  .amdhsa_system_sgpr_workgroup_id_x 1
.end_amdhsa_kernel
'''
s = s.replace('.section .rodata,"a"', code + '.section .rodata,"a"') + desc
open(dst, 'w').write(s)
```
